```python
import torch

def _softmax(x, axis=-1):
    return torch.softmax(x, dim=axis)
def _gelu(x):
    return torch.nn.functional.gelu(x, approximate="tanh")
def _silu(x):
    return torch.nn.functional.silu(x)
def _sigmoid(x):
    return torch.sigmoid(x)
def _layernorm(x, axis=-1, eps=1e-5):
    m = x.mean(dim=axis, keepdim=True)
    v = x.var(dim=axis, keepdim=True, unbiased=False)
    return (x - m) / torch.sqrt(v + eps)
def _scatter_add(tgt, idx, src, axis=0):
    return tgt.clone().index_add_(axis, idx, src)
def _segment_sum(src, seg, n):
    out = torch.zeros((n,) + src.shape[1:], dtype=src.dtype)
    return out.index_add_(0, seg, src)
def _pad(x, pw):
    flat = tuple(v for pair in reversed(pw) for v in pair)
    return torch.nn.functional.pad(x, flat)

kernel_name = 'parallel_sum__compressed_kv_cla__glu_gated_geglu__prompt'

def setup_inputs():

    _w = (lambda a: (lambda t: t.to(torch.bfloat16) if t.is_floating_point() else t)(torch.as_tensor(a)))
    def _A_setup():
        B, H, Sq, Sk, D, M = 1, 32, 2048, 2048, 128, 512
        Dc = 4 * D
        return {
            "x": _w((lambda *s: torch.randn(*s, dtype=torch.bfloat16) * 0.05)(B, Sq, M)),
            "c_kv": _w((lambda *s: torch.randn(*s, dtype=torch.bfloat16) * 0.4)(B, Sk, Dc)),
            "w_q": _w((lambda *s: torch.randn(*s, dtype=torch.bfloat16) * 3.2)(M, H, D) * (M ** -0.5)),
            "w_uk": _w((lambda *s: torch.randn(*s, dtype=torch.bfloat16) * 3.2)(Dc, H, D) * (Dc ** -0.5)),
            "w_uv": _w((lambda *s: torch.randn(*s, dtype=torch.bfloat16) * 0.4)(Dc, H, D) * (Dc ** -0.5)),
            "w_o": _w((lambda *s: torch.randn(*s, dtype=torch.bfloat16) * 0.4)(H, D, M) * ((H * D) ** -0.5)),
        }
    _A_in = _A_setup()

    def _B_setup():
        B, S, Dm, Df = 1, 2048, 512, 1792
        return {
            "x": _w((lambda *s: torch.randn(*s, dtype=torch.bfloat16) * 0.05)(B, S, Dm)),
            "w_gate": _w((lambda *s: torch.randn(*s, dtype=torch.bfloat16) * 0.4)(Dm, Df) * (Dm ** -0.5)),
            "w_up": _w((lambda *s: torch.randn(*s, dtype=torch.bfloat16) * 0.4)(Dm, Df) * (Dm ** -0.5)),
            "w_down": _w((lambda *s: torch.randn(*s, dtype=torch.bfloat16) * 0.4)(Df, Dm) * (Df ** -0.5)),
        }
    _B_in = _B_setup()

    return {
        "A_x": _A_in["x"],
        "A_c_kv": _A_in["c_kv"],
        "A_w_q": _A_in["w_q"],
        "A_w_uk": _A_in["w_uk"],
        "A_w_uv": _A_in["w_uv"],
        "A_w_o": _A_in["w_o"],
        "B_x": _B_in["x"],
        "B_w_gate": _B_in["w_gate"],
        "B_w_up": _B_in["w_up"],
        "B_w_down": _B_in["w_down"],
    }

def reference(A_x, A_c_kv, A_w_q, A_w_uk, A_w_uv, A_w_o, B_x, B_w_gate, B_w_up, B_w_down):
    def _A_ref(x, c_kv, w_q, w_uk, w_uv, w_o):
        B, Sq, M = x.shape[0], x.shape[1], x.shape[2]
        Sk = c_kv.shape[1]
        H, D = w_q.shape[1], w_q.shape[2]
        q = torch.einsum("bqm,mhd->bhqd", x, w_q)
        k = torch.einsum("bkc,chd->bhkd", c_kv, w_uk)
        v = torch.einsum("bkc,chd->bhkd", c_kv, w_uv)
        scores = torch.einsum("bhqd,bhkd->bhqk", q, k) * (D ** -0.5)
        off = Sk - Sq
        qi = torch.arange(Sq)[:, None]
        kj = torch.arange(Sk)[None, :]
        cmask = kj <= (qi + off)
        scores = torch.where(cmask[None, None], scores, -1e9)
        p = _softmax(scores, axis=-1)
        ctx = torch.einsum("bhqk,bhkd->bhqd", p, v)
        return torch.einsum("bhqd,hdm->bqm", ctx, w_o)

    def _B_ref(x, w_gate, w_up, w_down):
        g = torch.einsum("bsd,df->bsf", x, w_gate)
        u = torch.einsum("bsd,df->bsf", x, w_up)
        h = _gelu(g) * u
        return torch.einsum("bsf,fd->bsd", h, w_down)

    x = A_x
    xn = _layernorm(x, axis=-1)
    return x + _A_ref(xn, A_c_kv, A_w_q, A_w_uk, A_w_uv, A_w_o) + _B_ref(xn, B_w_gate, B_w_up, B_w_down)
```

```python
class Asm:
    def __init__(self):
        self.lines = []
        self.vm = []
        self.lg = []
    def __call__(self, s, vm=None, lg=None):
        for x in s.split("\n"):
            x = x.strip()
            if x: self.lines.append("    " + x)
        if vm is not None: self.vm.append(vm)
        if lg is not None: self.lg.append(lg)
    def label(self, l): self.lines.append(l + ":")
    def raw(self, s): self.lines.append(s)
    def text(self): return "\n".join(self.lines) + "\n"
    @staticmethod
    def _after(q, pred):
        for n, t in enumerate(reversed(q)):
            if pred(t): return n
        return None
    def vm_n(self, pred): return self._after(self.vm, pred)
    def lg_n(self, pred): return self._after(self.lg, pred)

def v(b, n=1): return f"v{b}" if n == 1 else f"v[{b}:{b+n-1}]"
def a(b, n=1): return f"a{b}" if n == 1 else f"a[{b}:{b+n-1}]"
def s(b, n=1): return f"s{b}" if n == 1 else f"s[{b}:{b+n-1}]"
def r(x, n=4):
    return (v if x[0] == 'v' else a)(x[1], n)
def mfma(d, x, y, c=None):
    cc = r(d) if c is None else (c if isinstance(c, str) else r(c))
    return f"v_mfma_f32_16x16x32_bf16 {r(d)}, {r(x)}, {r(y)}, {cc}"

class Item:
    def __init__(self, text, kind, vm=None, lg=None):
        self.text, self.kind, self.vm, self.lg = text, kind, vm, lg
ORDER = {'s': 0, 'dma': 1, 'ds': 1, 'v': 2}
def emit_gaps(A, mf, gaps):
    assert len(mf) == len(gaps)
    for m, g in zip(mf, gaps):
        if m is not None: A(m)
        for it in sorted(g, key=lambda z: ORDER[z.kind]):
            t = it.text(A) if callable(it.text) else it.text
            if t: A(t, vm=it.vm, lg=it.lg)
def S(t): return Item(t, 's')
def V(t): return Item(t, 'v')
def DS(t, tag): return Item(t, 'ds', lg=tag)
def VM(t, tag): return Item(t, 'dma', vm=tag)
def wait(vm=None, lg=None, vmx=0):
    def f(A):
        p = []
        if vm is not None:
            n = vm if isinstance(vm, int) else A.vm_n(vm)
            if n is not None: p.append(f"vmcnt({min(n + vmx, 63)})")
        if lg is not None:
            n = lg if isinstance(lg, int) else A.lg_n(lg)
            if n is not None: p.append(f"lgkmcnt({min(n, 15)})")
        return "s_waitcnt " + " ".join(p) if p else None
    return Item(f, 's')
```

```python
import sys, math, struct
from asmlib import *

NAME = "parallel_sum__compressed_kv_cla__glu_gated_geglu__prompt"
PROF = False
WS_XN, WS_KV, WS_A3, WS_PROF = 0, 0x400000, 0x2400000, 0x4000000
A3_ROW = 184 * 1024
A3_SIZE = 128 * A3_ROW
sX, sCKV, sWQ, sWUK, sWUV, sWO, sWG, sWU, sWD, sOUT, sDBG, sWS = 4, 6, 8, 10, 12, 14, 18, 20, 22, 24, 26, 28
sW, sH, sI, sWR, sWC, sT = 30, 31, 32, 33, 34, 35
rA, rW, rO, rX = 36, 40, 44, 48
sWoff, sWi0, sWi1, sAo0, sAo1, sWm, sAm = 52, 53, 54, 55, 56, 57, 58
sT2, sC0 = 59, 60
sJ, sT3 = 62, 63
sMask = 64
sRd, sWs, sSrc, sCnt, sW8 = 52, 53, 54, 55, 56
sP0 = 96
vL, vAd0, vAd1, vWd0, vWd1, vAr, vWr, vL16 = 0, 1, 2, 3, 4, 5, 9, 15
WB = 98304

def f2u(x): return struct.unpack("<I", struct.pack("<f", x))[0]

def srd(A, r0, ptr, off, size):
    if off == 0:
        A(f"s_mov_b32 s{r0}, s{ptr}\ns_mov_b32 s{r0+1}, s{ptr+1}")
    else:
        A(f"s_add_u32 s{r0}, s{ptr}, {off}\ns_addc_u32 s{r0+1}, s{ptr+1}, 0")
    A(f"s_mov_b32 s{r0+2}, {size}\ns_mov_b32 s{r0+3}, 0x20000")

def stamp(A, k):
    if not PROF: return
    A(f"""s_memtime s[{sP0}:{sP0+1}]
    s_memrealtime s[{sP0+2}:{sP0+3}]
    s_waitcnt lgkmcnt(0)
    v_writelane_b32 v{vL16-1 if False else 0}, s{sP0}, 0""") if False else None

def prologue(A, end):
    A(f"""s_cmp_ge_u32 s2, 256
    s_cbranch_scc1 {end}
    s_load_dwordx16 s[4:19], s[0:1], 0
    s_load_dwordx8 s[20:27], s[0:1], 64
    s_load_dwordx2 s[28:29], s[0:1], 96
    v_lshrrev_b32 v1, 6, v0
    v_and_b32 v{vL}, 63, v0
    v_readfirstlane_b32 s{sW}, v1
    s_and_b32 s{sH}, s2, 7
    s_lshl_b32 s{sH}, s{sH}, 2
    s_bfe_u32 s{sT}, s2, 0x20003
    s_add_u32 s{sH}, s{sH}, s{sT}
    s_lshr_b32 s{sI}, s2, 5
    s_lshr_b32 s{sWR}, s{sW}, 1
    s_and_b32 s{sWC}, s{sW}, 1
    v_lshlrev_b32 v{vL16}, 4, v{vL}""")

def acc_map():
    m = {}; n = 0
    def nxt():
        nonlocal n
        x = ('v', 16 + 4*n) if n < 60 else ('a', 128 + 4*(n - 60)); n += 1; return x
    for j in range(4, 8):
        for i in range(8): m[(j, i)] = nxt()
    for jj in range(2):
        for i in range(8):
            m[(2*jj, i)] = nxt(); m[(2*jj+1, i)] = nxt()
    return m

def gemm_read_addrs(A, t0):
    c, rr, g, k0, f, row = t0, t0+1, t0+2, t0+3, t0+4, t0+5
    A(f"""v_and_b32 v{row}, 15, v{vL}
    v_lshrrev_b32 v{g}, 4, v{vL}
    v_lshrrev_b32 v{f}, 1, v{row}
    v_xor_b32 v{f}, v{f}, v{g}
    v_lshlrev_b32 v{f}, 4, v{f}
    v_lshl_add_u32 v{vAr}, v{row}, 7, v{f}
    s_lshl_b32 s{sT}, s{sWR}, 14
    v_add_u32 v{vAr}, s{sT}, v{vAr}
    v_xor_b32 v{vAr+1}, 64, v{vAr}
    v_add_u32 v{vAr+2}, 0x10000, v{vAr}
    v_add_u32 v{vAr+3}, 0x10000, v{vAr+1}
    v_and_b32 v{c}, 3, v{vL}
    v_bfe_u32 v{rr}, v{vL}, 2, 2
    v_lshl_add_u32 v{k0}, v{g}, 3, v{rr}
    v_lshlrev_b32 v{k0}, 7, v{k0}
    v_lshl_add_u32 v{k0}, v{c}, 3, v{k0}
    v_lshrrev_b32 v{f}, 1, v{rr}
    v_and_b32 v{g}, 1, v{g}
    v_lshl_add_u32 v{f}, v{g}, 1, v{f}
    v_lshl_add_u32 v{k0}, v{f}, 5, v{k0}
    s_lshl_b32 s{sT}, s{sWC}, 12
    s_add_u32 s{sT}, s{sT}, {WB}
    v_add_u32 v{vWr}, s{sT}, v{k0}
    v_xor_b32 v{vWr+1}, 32, v{vWr}
    v_xor_b32 v{vWr+2}, 64, v{vWr}
    v_xor_b32 v{vWr+3}, 96, v{vWr}
    s_lshl_b32 s{sT}, s{sWC}, 6
    v_xor_b32 v{k0}, s{sT}, v{k0}
    v_add_u32 v{vWr+4}, {WB + 8192}, v{k0}
    v_xor_b32 v{vWr+5}, 32, v{vWr+4}
    s_lshl_b32 s{sWm}, s{sW}, 12
    s_add_u32 s{sWm}, s{sWm}, {WB}
    s_lshl_b32 s{sAm}, s{sW}, 13""")

def gemm_dma_addrs(A, t0, rowbase, stride, colbase):
    r8, c8, g = t0, t0+1, t0+2
    A(f"""v_lshrrev_b32 v{r8}, 3, v{vL}
    v_and_b32 v{c8}, 7, v{vL}
    v_lshrrev_b32 v{g}, 4, v{vL}
    v_xor_b32 v{vAd0}, v{c8}, v{g}
    v_lshlrev_b32 v{vAd0}, 4, v{vAd0}
    v_add_u32 v{vAd1}, s{rowbase}, v{r8}
    v_lshl_add_u32 v{vAd0}, v{vAd1}, 10, v{vAd0}
    v_xor_b32 v{vAd1}, 64, v{vAd0}
    v_and_b32 v{g}, 1, v{g}
    v_lshlrev_b32 v{g}, 1, v{g}
    v_xor_b32 v{c8}, v{c8}, v{g}
    v_lshlrev_b32 v{c8}, 4, v{c8}
    v_mul_lo_u32 v{r8}, v{r8}, s{stride}
    v_add3_u32 v{vWd0}, v{r8}, v{c8}, s{colbase}
    v_xor_b32 v{vWd1}, 64, v{vWd0}
    s_mov_b32 s{sWoff}, 0
    s_lshl_b32 s{sWi0}, s{stride}, 3
    s_add_u32 s{sWi1}, s{sWi0}, 3072
    s_sub_u32 s{sWi0}, s{sWi0}, 1024""")

def dma_w(s_):
    out = []
    for j in range(4):
        pre = []
        if j == 0: pre.append(S(f"s_add_u32 m0, s{sWm}, {(s_ % 4) * 16384}"))
        if not (s_ == 0 and j == 0): pre.append(S(f"s_add_u32 s{sWoff}, s{sWoff}, s{sWi1 if j == 0 else sWi0}"))
        out.append((pre, VM(f"buffer_load_dwordx4 v{vWd0 + (j & 1)}, {s(rW,4)}, s{sWoff} offen offset:{1024*j} lds", ('W', s_))))
    return out
def dma_a(hs):
    out = []
    st, hf = hs >> 1, hs & 1
    for jj in range(4):
        j = 4*hf + jj
        pre = []
        if jj == 0: pre.append(S(f"s_add_u32 m0, s{sAm}, {(st % 3) * 32768 + hf * 4096}"))
        so = sAo0 + (jj & 1)
        pre.append(S(f"s_mov_b32 s{so}, {j*8192 + st*128 - jj*1024}"))
        out.append((pre, VM(f"buffer_load_dwordx4 v{vAd0 + (jj & 1)}, {s(rA,4)}, s{so} offen offset:{1024*jj} lds", ('A', st))))
    return out
def emit_plain(A, lst):
    for pre, d in lst:
        emit_gaps(A, [None], [pre])
        if any('m0' in p.text for p in pre[-1:]): A("s_nop 0")
        emit_gaps(A, [None], [[d]])
def frag_w(set_, j): return ('a', 64*set_ + 4*j)
def frag_x(set_, i): return ('a', 64*set_ + 32 + 4*i)
def reads(s_):
    out = []
    st, p = s_ >> 1, s_ & 1
    for f in range(8):
        w = frag_w(s_ & 1, f)[1]
        if f < 4: base, off = vWr + f, 0
        else: base, off = vWr + 4 + (f & 1), 4096 * ((f - 4) >> 1)
        off += (s_ % 4) * 16384
        t0 = DS(f"ds_read_b64_tr_b16 {a(w,2)}, v{base} offset:{off}", ('F', s_))
        t1 = DS(f"ds_read_b64_tr_b16 {a(w+2,2)}, v{base} offset:{off+512}", ('F', s_))
        sl = st % 3
        x = DS(f"ds_read_b128 {r(frag_x(s_ & 1, f))}, v{vAr + p + (2 if sl == 2 else 0)} offset:{(sl & 1) * 32768 + f * 2048}", ('F', s_))
        out.append((t0, t1, x))
    return out
def landed(s_):
    return lambda t: t == ('W', s_) or t == ('A', s_ >> 1)

def gemm_start(A):
    emit_plain(A, dma_a(0))
    for k in range(4):
        emit_plain(A, dma_w(k)); emit_plain(A, dma_a(k + 1))
def gemm_first_reads(A):
    emit_gaps(A, [None], [[wait(vm=landed(0)), S("s_barrier")]])
    for t0, t1, x in reads(0): emit_gaps(A, [None], [[t0, t1, x]])
    emit_gaps(A, [None], [[wait(vm=landed(1), lg=0), S("s_barrier")]])

def gemm_steps(A, acc, swapped, last_extra=None):
    for s_ in range(16):
        mf = []
        for j in range(8):
            for i in (range(8) if j % 2 == 0 else range(7, -1, -1)):
                w, x = frag_w(s_ & 1, j), frag_x(s_ & 1, i)
                d = acc[(j, i)]
                mf.append(mfma(d, x, w, "0" if s_ == 0 else None) if swapped(j) else mfma(d, w, x, "0" if s_ == 0 else None))
        gaps = [[] for _ in range(64)]
        if s_ + 1 < 16:
            for f, (t0, t1, x) in enumerate(reads(s_ + 1)):
                gaps[6*f + 1] += [t0, t1]; gaps[6*f + 3].append(x)
        dm = (dma_w(s_ + 4) if s_ + 4 < 16 else []) + (dma_a(s_ + 5) if s_ + 5 < 16 else [])
        for f, (pre, d) in enumerate(dm):
            gaps[6*f + 4] += pre; gaps[6*f + 5].append(d)
        if s_ + 1 < 16:
            gaps[62].append(wait(vm=landed(s_ + 2) if s_ + 2 < 16 else None, lg=0))
            gaps[63].append(S("s_barrier"))
        elif last_extra: last_extra(gaps)
        emit_gaps(A, mf, gaps)

def pack(A, d, t0, t1):
    A(f"""v_cvt_pk_bf16_f32 v{d}, v{t0}, v{t0+1}
    v_cvt_pk_bf16_f32 v{d+1}, v{t0+2}, v{t0+3}
    v_cvt_pk_bf16_f32 v{d+2}, v{t1}, v{t1+1}
    v_cvt_pk_bf16_f32 v{d+3}, v{t1+2}, v{t1+3}""")
def fetch(A, t, tmp):
    if t[0] == 'v': return t[1]
    for k in range(4): A(f"v_accvgpr_read_b32 v{tmp+k}, a{t[1]+k}")
    return tmp

def ln_load(A):
    srd(A, rX, sX, 0, 0x200000)
    A(f"""s_lshl_b32 s{sT}, s2, 2
    s_add_u32 s{sT}, s{sT}, s{sW}
    s_lshl_b32 s{sT}, s{sT}, 11
    v_lshl_add_u32 v48, v{vL}, 5, s{sT}""")
    A(f"buffer_load_dwordx4 v[16:19], v48, {s(rX,4)}, 0 offen", vm='ln')
    A(f"buffer_load_dwordx4 v[20:23], v48, {s(rX,4)}, 0 offen offset:16", vm='ln')
def ln_reduce(A, x, t):
    for m in (1, 2, 4, 8, 16):
        A(f"""ds_swizzle_b32 v{t}, v{x} offset:{hex((m << 10) | 0x1f)}
        s_waitcnt lgkmcnt(0)
        v_add_f32 v{x}, v{x}, v{t}""")
def rbf(A, x):
    A(f"v_cvt_pk_bf16_f32 v{x}, v{x}, v{x}\nv_lshlrev_b32 v{x}, 16, v{x}")
def ln_compute(A, flags=""):
    emit_gaps(A, [None], [[wait(vm=lambda t: t == 'ln')]])
    for k in range(8):
        A(f"v_lshlrev_b32 v{24+2*k}, 16, v{16+k}\nv_and_b32 v{25+2*k}, 0xffff0000, v{16+k}")
    A("v_add_f32 v40, v24, v25")
    for k in range(2, 16): A(f"v_add_f32 v40, v40, v{24+k}")
    ln_reduce(A, 40, 41)
    A(f"v_mul_f32 v40, {hex(f2u(1/512))}, v40\nv_mov_b32 v42, 0")
    for k in range(16): A(f"v_sub_f32 v41, v{24+k}, v40\nv_fmac_f32 v42, v41, v41")
    ln_reduce(A, 42, 41)
    A(f"v_mul_f32 v42, {hex(f2u(1/512))}, v42")
    rbf(A, 40); rbf(A, 42)
    A(f"v_add_f32 v42, {hex(f2u(1e-5))}, v42"); rbf(A, 42)
    A("v_sqrt_f32 v42, v42\ns_nop 0"); rbf(A, 42)
    A("v_rcp_f32 v42, v42")
    for k in range(8):
        A(f"""v_sub_f32 v{24+2*k}, v{24+2*k}, v40
        v_sub_f32 v{25+2*k}, v{25+2*k}, v40
        v_cvt_pk_bf16_f32 v41, v{24+2*k}, v{25+2*k}
        v_lshlrev_b32 v{24+2*k}, 16, v41
        v_and_b32 v{25+2*k}, 0xffff0000, v41
        v_mul_f32 v{24+2*k}, v{24+2*k}, v42
        v_mul_f32 v{25+2*k}, v{25+2*k}, v42
        v_cvt_pk_bf16_f32 v{16+k}, v{24+2*k}, v{25+2*k}""")
    srd(A, rX, sWS, WS_XN, 0x200000)
    A(f"buffer_store_dwordx4 v[16:19], v48, {s(rX,4)}, 0 offen {flags}", vm='lns')
    A(f"buffer_store_dwordx4 v[20:23], v48, {s(rX,4)}, 0 offen offset:16 {flags}", vm='lns')

def k1(A):
    prologue(A, "L1_end")
    A("s_waitcnt lgkmcnt(0)")
    ln_load(A)
    srd(A, rA, sCKV, 0, 0x200000)
    A(f"""s_cmp_lt_u32 s{sW}, 2
    s_cselect_b32 s{rW}, s{sWUK}, s{sWUV}
    s_cselect_b32 s{rW+1}, s{sWUK+1}, s{sWUV+1}
    s_mov_b32 s{rW+2}, 0x400000
    s_mov_b32 s{rW+3}, 0x20000
    s_lshl_b32 s{sT2}, s{sI}, 2
    s_add_u32 s{sT2}, s{sT2}, s{sW}
    s_lshl_b32 s{sT2}, s{sT2}, 6
    s_lshl_b32 s{sT3}, s{sH}, 1
    s_add_u32 s{sT3}, s{sT3}, s{sWC}
    s_lshl_b32 s{sT3}, s{sT3}, 7
    s_mov_b32 s{sJ}, 8192""")
    gemm_dma_addrs(A, 56, sT2, sJ, sT3)
    gemm_read_addrs(A, 56)
    gemm_start(A)
    ln_compute(A)
    gemm_first_reads(A)
    acc = acc_map()
    gemm_steps(A, acc, lambda j: j >= 4)
    A(f"s_lshl_b32 s{sT}, s{sH}, 20\ns_add_u32 s{sT}, s{sT}, {WS_KV}")
    srd(A, rO, sWS, f"s{sT}", 0x100000)
    A(f"""s_lshl_b32 s{sT}, s{sI}, 1
    s_add_u32 s{sT}, s{sT}, s{sWR}
    s_lshl_b32 s{sT}, s{sT}, 16
    s_lshl_b32 s{sT2}, s{sWC}, 11
    s_add_u32 s{sT}, s{sT}, s{sT2}
    v_add_u32 v1, s{sT}, v{vL16}""")
    pairs = []
    for jj in range(2):
        for i in range(8): pairs.append((acc[(2*jj, i)], acc[(2*jj+1, i)], (i >> 1)*16384 + (i & 1)*4096 + jj*1024))
    for j in range(4, 8):
        for u in range(4): pairs.append((acc[(j, 2*u)], acc[(j, 2*u+1)], u*16384 + 8192 + (j - 4 if j < 6 else j - 2)*1024))
    free = [p[1][1] for p in pairs[:4]]
    for n, (t0, t1, off) in enumerate(pairs):
        if t0[0] == 'a':
            x0 = fetch(A, t0, free.pop()); x1 = fetch(A, t1, free.pop())
        else: x0, x1 = t0[1], t1[1]
        pack(A, x0, x0, x1)
        A(f"s_mov_b32 s{sAo0 + (n & 1)}, {off & ~4095}")
        A(f"buffer_store_dwordx4 {v(x0,4)}, v1, {s(rO,4)}, s{sAo0 + (n & 1)} offen offset:{off & 4095}", vm='kv')
    A.label("L1_end")
    A("s_endpgm")

vS, vP, vNM, vCm, vLs, vOne, vNeg, vR, vD, vTmp, vO = 16, 32, 40, 56, 72, 88, 92, 93, 94, 96, 128
aQ = 128
def Kf(st, f): return ('a', 32*st + 4*f)
def Vf(st, f): return ('a', 64 + 32*st + 4*f)
def Qf(q, ks): return ('a', aQ + 16*q + 4*ks)
def Of(q, dt): return ('v', vO + 32*q + 4*dt)
FREE2, FREE1 = (1, 5, 9, 13, 16), (3, 7, 11, 15)

def rd_k(b2, f):
    return DS(f"ds_read_b128 {r(Kf(1 - b2, f))}, v{vR} offset:{b2*16384 + 8192 + f*1024}", ('K', 1 - b2))
def rd_v(b2, f):
    return DS(f"ds_read_b128 {r(Vf(b2, f))}, v{vR} offset:{b2*16384 + f*1024}", ('V', b2))
def kv_dma(n):
    return VM(f"buffer_load_dwordx4 v{vD}, {s(rO,4)}, s{sSrc} offen offset:{1024*(n & 3)} lds", 'kv')
def cmask(q, u, buf):
    return [V(f"v_cndmask_b32 v{vCm + 8*buf + 4*kt + rr}, v{vNeg}, v{vNM + 4*q}, {s(sMask + 8*(u + kt) + 2*rr, 2)}") for kt in range(2) for rr in range(4)]

class Period:
    def __init__(self, n, cur, pv, sm=True):
        par = n & 1
        self.mf = []
        if cur:
            q, ks_, cb = cur
            for ks in range(4):
                for kt in range(2):
                    c = None
                    if ks == 0: c = ('v', vNM + 4*q) if cb is None else ('v', vCm + 8*cb + 4*kt)
                    self.mf.append(mfma(('v', vS + 8*par + 4*kt), Kf(ks_, kt*4 + ks), Qf(q, ks), c))
        else: self.mf += [None]*8
        q, vs = pv
        P = ('v', vP + 4*par)
        self.mf.append(mfma(('v', vLs + 4*q), ('v', vOne), P))
        for dt in range(8): self.mf.append(mfma(Of(q, dt), Vf(vs, dt), P))
        self.g = [[] for _ in range(17)]
        if sm:
            sr, pw = vS + 8*(1 - par), vP + 4*(1 - par)
            for e in range(8): self.g[2*e].append(V(f"v_exp_f32 v{sr+e}, v{sr+e}"))
            for k in range(4): self.g[4*k + 3].append(V(f"v_cvt_pk_bf16_f32 v{pw+k}, v{sr+2*k}, v{sr+2*k+1}"))
        self.g[6].append(wait(lg=lambda t, vs=vs: t == ('V', vs)))
    def put(self, gaps, items):
        assert len(gaps) == len(items), (gaps, len(items))
        for gi, it in zip(gaps, items): self.g[gi].append(it)
    def emit(self, A): emit_gaps(A, self.mf, self.g)

DS8 = (1, 1, 3, 7, 9, 9, 11, 15)
def pair_scalars(ps, dgaps):
    ps[0].g[0].append(S("s_barrier"))
    if dgaps:
        p, g = dgaps[0]; ps[p].g[g-1].append(S(f"s_add_u32 m0, s{sWs}, s{sW8}"))
        p, g = dgaps[3]; ps[p].g[g+1].append(S(f"s_add_u32 m0, m0, 4096")); ps[p].g[g+2].append(S(f"s_add_u32 s{sSrc}, s{sSrc}, 4096"))
        p, g = dgaps[7]; ps[p].g[g+1].append(S(f"s_add_u32 s{sSrc}, s{sSrc}, 28672"))
        for n, (p, g) in enumerate(dgaps): ps[p].g[g].append(kv_dma(n))
        for gi, t in zip((0, 2, 4), (f"s_add_u32 s{sWs}, s{sWs}, 32768", f"s_cmp_eq_u32 s{sWs}, 163840", f"s_cselect_b32 s{sWs}, 0, s{sWs}")):
            ps[1].g[gi].append(S(t))
    for gi, t in zip((8, 10, 12), (f"s_add_u32 s{sRd}, s{sRd}, 32768", f"s_cmp_eq_u32 s{sRd}, 163840", f"s_cselect_b32 s{sRd}, 0, s{sRd}")):
        ps[0].g[gi].append(S(t))
def pair_end(p, vm):
    p.g[16].append(wait(vm=vm, lg=lambda t: t == ('K', 0)))
    p.g[16].append(V(f"v_add_u32 v{vR}, s{sRd}, v{vL16}"))
def canon(A): A.lg = [('V', 1)]*8

def pair_units(A, blocks, n0, dma=True, vm_end=16, tail=None):
    units = [(q, b2, u) for b2, bl in enumerate(blocks) for (q, u) in bl]
    prev = [(2, 1), (3, 1)] if tail is None else tail
    seq = prev + [(q, b2) for q, b2, u in units]
    ps = []
    for k, (q, b2, u) in enumerate(units):
        ps.append(Period(n0 + k, (q, b2, None if u is None else b2), seq[k]))
    k = 0; dg = []
    for b2, bl in enumerate(blocks):
        nb = len(bl)
        kk = [rd_k(b2, f) for f in range(8)]; vv = [rd_v(b2, f) for f in range(8)]
        if nb == 4:
            ps[k].put((1, 3, 7, 9, 11, 15), vv[:6]); ps[k+1].put((1, 3, 7, 9, 11, 15), vv[6:] + kk[:4]); ps[k+2].put((1, 3, 7, 9), kk[4:])
            dg += [(k + z, 5) for z in range(4)]
        elif nb == 3:
            ps[k].put((1, 3, 7, 9, 11, 15), vv[:6]); ps[k+1].put((1, 3, 7, 9, 11, 15), vv[6:] + kk[:4]); ps[k+2].put((1, 1, 3, 7), kk[4:])
            dg += [(k, 5), (k, 13), (k+1, 5), (k+2, 5)]
        elif nb == 2:
            ps[k].put(DS8, kk); ps[k+1].put(DS8, vv)
            dg += [(k, 5), (k, 13), (k+1, 5), (k+1, 13)]
        if b2 == 0: ps[k + nb - 1].g[16].append(wait(lg=lambda t: t == ('K', 1)))
        k += nb
    return ps, dg

def attention(A):
    A(f"s_lshl_b32 s{sCnt}, s{sI}, 1\ns_cmp_eq_u32 s{sCnt}, 0\ns_cbranch_scc1 L_diag_lo")
    A.raw(".p2align 6"); A.label("L_dual")
    canon(A)
    full = [(0, None), (1, None), (2, None), (3, None)]
    ps, dg = pair_units(A, [full, full], 0)
    pair_scalars(ps, dg); pair_end(ps[-1], 16)
    ps[-1].g[12].append(S(f"s_sub_u32 s{sCnt}, s{sCnt}, 1")); ps[-1].g[14].append(S(f"s_cmp_lg_u32 s{sCnt}, 0"))
    for p in ps: p.emit(A)
    A("s_cbranch_scc1 L_dual")
    A.label("L_diag_lo")
    canon(A)
    emit_gaps(A, [None], [cmask(0, 0, 0)]); A("s_nop 1")
    ps, dg = pair_units(A, [[(0, 0), (1, None), (2, None), (3, None)], [(0, 2), (1, None), (2, None), (3, None)]], 0)
    pair_scalars(ps, dg); pair_end(ps[-1], 16)
    ps[3].put((1, 1, 3, 7, 9, 9, 11, 13), cmask(0, 2, 1))
    ps[7].put((1, 1, 3, 7, 9, 9, 11, 13), cmask(1, 0, 0))
    for p in ps: p.emit(A)
    ps, dg = pair_units(A, [[(1, 0), (2, None), (3, None)], [(1, 2), (2, None), (3, None)]], 0)
    pair_scalars(ps, dg); pair_end(ps[-1], 16)
    cm = cmask(1, 2, 1)
    ps[1].put((13, 13, 16, 16), cm[:4]); ps[2].put((9, 9, 11, 13), cm[4:])
    for p in ps: p.emit(A)
    A(f"s_lshl_b32 s{sCnt}, s{sI}, 1\ns_sub_u32 s{sCnt}, 14, s{sCnt}\ns_cmp_eq_u32 s{sCnt}, 0\ns_cbranch_scc1 L_diag_hi")
    A.raw(".p2align 6"); A.label("L_single")
    hi = [(2, None), (3, None)]
    for rep in range(2):
        canon(A)
        ps, dg = pair_units(A, [hi, hi], 0)
        pair_scalars(ps, dg); pair_end(ps[-1], 16)
        if rep == 1:
            ps[-1].g[12].append(S(f"s_sub_u32 s{sCnt}, s{sCnt}, 1")); ps[-1].g[15].append(S(f"s_cmp_lg_u32 s{sCnt}, 0"))
        for p in ps: p.emit(A)
    A("s_cbranch_scc1 L_single")
    A.label("L_diag_hi")
    canon(A)
    emit_gaps(A, [None], [cmask(2, 0, 0)]); A("s_nop 1")
    ps, dg = pair_units(A, [[(2, 0), (3, None)], [(2, 2), (3, None)]], 0)
    pair_scalars(ps, None); pair_end(ps[-1], 8)
    cm = cmask(2, 2, 1); ps[0].put((5, 5, 13, 13), cm[:4]); ps[1].put((5, 5, 13, 13), cm[4:])
    cm = cmask(3, 0, 0); ps[2].put((5, 5, 13, 13), cm[:4]); ps[3].put((5, 5, 13, 13), cm[4:])
    for p in ps: p.emit(A)
    p0 = Period(0, (3, 0, 0), (2, 1)); p1 = Period(1, (3, 1, 1), (3, 1))
    p2 = Period(2, None, (3, 0)); p3 = Period(3, None, (3, 1), sm=False)
    p0.g[0].append(S("s_barrier"))
    p0.put((1, 1, 3, 5, 5, 7, 9, 9), [rd_k(0, f) for f in range(8)])
    p0.put((11, 13, 13, 15, 16, 16, 16, 16), cmask(3, 2, 1))
    p0.g[16].append(wait(lg=0)); p0.g[16].append(V("s_nop 1"))
    p1.put(DS8, [rd_v(0, f) for f in range(8)])
    p2.put((0, 0, 1, 1, 2, 2, 3, 3), [rd_v(1, f) for f in range(8)])
    p2.g[2].append(V("s_nop 0")); p2.g[6].append(V("s_nop 0"))
    p3.g[7].append(V("s_nop 1"))
    for p in (p0, p1, p2, p3): p.emit(A)

def k2(A):
    prologue(A, "L2_end")
    A("s_waitcnt lgkmcnt(0)")
    srd(A, rA, sWS, WS_XN, 0x200000)
    A(f"""s_lshr_b32 s{sT}, s{sH}, 3
    s_sub_u32 s{sJ}, s{sH}, s{sT}
    s_and_b32 s{sT}, s{sH}, 7
    s_cmp_eq_u32 s{sT}, 7
    s_cselect_b32 s{sT}, 0, {512*3584}
    s_cmp_eq_u32 s{sW}, 2
    s_cselect_b32 s{rW}, s{sWG}, s{sWU}
    s_cselect_b32 s{rW+1}, s{sWG+1}, s{sWU+1}
    s_cmp_lt_u32 s{sW}, 2
    s_cselect_b32 s{rW}, s{sWQ}, s{rW}
    s_cselect_b32 s{rW+1}, s{sWQ+1}, s{rW+1}
    s_cselect_b32 s{rW+2}, 0x400000, s{sT}
    s_mov_b32 s{rW+3}, 0x20000
    s_lshl_b32 s{sT3}, s{sH}, 1
    s_add_u32 s{sT3}, s{sT3}, s{sWC}
    s_sub_u32 s{sT2}, 15, s{sI}
    s_cmp_lt_u32 s{sW}, 2
    s_cselect_b32 s{sT3}, s{sT3}, s{sJ}
    s_cselect_b32 s{sT2}, s{sT2}, s{sI}
    s_cselect_b32 s{sC0}, 8192, 3584
    s_lshl_b32 s{sT3}, s{sT3}, 7
    s_lshl_b32 s{sT2}, s{sT2}, 1
    s_add_u32 s{sT2}, s{sT2}, s{sWC}
    s_lshl_b32 s{sT2}, s{sT2}, 6""".replace("s_cselect_b32 s60, 8192, 3584", f"s_movk_i32 s{sC0+1}, 3584\ns_cselect_b32 s{sC0}, 8192, s{sC0+1}"))
    gemm_dma_addrs(A, 56, sT2, sC0, sT3)
    gemm_read_addrs(A, 56)
    gemm_start(A)
    for u in range(4):
        for rr in range(4):
            m = sum(1 << l for l in range(64) if (l & 15) >= 4*(l >> 4) + rr)
            d = sMask + 8*u + 2*rr
            A(f"""s_cmp_eq_u32 s{sW}, {u}
            s_cselect_b32 s{d}, {hex(m & 0xffffffff)}, 0
            s_cselect_b32 s{d+1}, {hex(m >> 32)}, 0
            s_cmp_gt_u32 s{sW}, {u}
            s_cselect_b64 {s(d,2)}, -1, {s(d,2)}""")
    A(f"s_lshl_b32 s{sT}, s{sH}, 20\ns_add_u32 s{sT}, s{sT}, {WS_KV}")
    srd(A, rO, sWS, f"s{sT}", 0)
    A(f"s_sub_u32 s{sT}, 16, s{sI}\ns_lshl_b32 s{rO+2}, s{sT}, 16")
    srd(A, rX, sWS, WS_A3, A3_SIZE)
    gemm_first_reads(A)
    acc = acc_map()
    def last(gaps):
        gaps[0] += [S(f"s_lshl_b32 s{sW8}, s{sW}, 13"), S(f"s_mov_b32 s{sSrc}, 4096")]
        gaps[1] += [V(f"v_add_u32 v1, s{sW8}, v{vL16}")]
        for f in range(8):
            gaps[2 + f].append(VM(f"buffer_load_dwordx4 {r(Kf(0, f))}, v{vL16}, {s(rO,4)}, {'0' if f < 4 else 's%d' % sSrc} offen offset:{1024*(f & 3)}", 'k0'))
        g = 10
        for p in range(3):
            for hf in range(2):
                gaps[g] += [S(f"s_add_u32 m0, s{sW8}, {p*32768 + hf*4096}"), S(f"s_mov_b32 s{sSrc}, {p*32768 + 8192 + hf*4096}")]
                for n in range(4):
                    gaps[g + 1 + 2*n].append(VM(f"buffer_load_dwordx4 v1, {s(rO,4)}, s{sSrc} offen offset:{1024*n} lds", ('kv', p)))
                g += 8
    gemm_steps(A, acc, lambda j: False, last)
    c = math.log2(math.e) / math.sqrt(128.0)
    A(f"""s_mov_b32 s{sC0}, {hex(f2u(c))}
    s_mov_b32 s{sC0+1}, {hex(f2u(c))}
    s_lshl_b32 s{sT}, s{sWR}, 15
    s_lshl_b32 s{sT2}, s{sWC}, 11
    s_add_u32 s{sT}, s{sT}, s{sT2}
    s_add_u32 s{sT}, s{sT}, {WB}
    v_add_u32 v2, s{sT}, v{vL16}
    s_lshl_b32 s{sT}, s{sW}, 12
    s_add_u32 s{sT}, s{sT}, {WB}
    v_add_u32 v3, s{sT}, v{vL16}""")
    pairs = [(acc[(2*jj, i)], acc[(2*jj+1, i)], i*4096 + jj*1024) for jj in range(2) for i in range(8)]
    free = [p[1][1] for p in pairs[:4]]
    for t0, t1, off in pairs:
        if t0[0] == 'a':
            x0 = fetch(A, t0, free.pop()); x1 = fetch(A, t1, free.pop())
        else: x0, x1 = t0[1], t1[1]
        for x in (x0, x0+2, x1, x1+2): A(f"v_pk_mul_f32 {v(x,2)}, {v(x,2)}, {s(sC0,2)}")
        pack(A, x0, x0, x1)
        A(f"ds_write_b128 v2, {v(x0,4)} offset:{off}")
    A("s_waitcnt lgkmcnt(0)\ns_barrier")
    for q in range(4):
        for ks in range(4):
            A(f"ds_read_b128 {r(Qf(q, ks))}, v3 offset:{(32768, 49152, 0, 16384)[q] + ks*1024}")
    k1_ = -2.0 * math.sqrt(2.0/math.pi) * math.log2(math.e)
    T = 208; K1, K2, ONE = 200, 202, 204
    A(f"""s_and_b32 s{sT}, s{sH}, 7
    s_cmp_eq_u32 s{sT}, 7
    s_cbranch_scc1 L_no_ffn
    v_mov_b32 v{K1}, {hex(f2u(k1_))}
    v_mov_b32 v{K1+1}, {hex(f2u(k1_))}
    v_mov_b32 v{K2}, {hex(f2u(k1_*0.044715))}
    v_mov_b32 v{K2+1}, {hex(f2u(k1_*0.044715))}
    v_mov_b32 v{ONE}, 1.0
    v_mov_b32 v{ONE+1}, 1.0
    s_sub_u32 s{sT}, 15, s{sI}
    s_cmp_eq_u32 s{sWR}, 0
    s_cselect_b32 s{sT}, s{sT}, s{sI}
    s_mul_i32 s{sT}, s{sT}, {8*A3_ROW}
    s_lshl_b32 s{sT2}, s{sJ}, 1
    s_add_u32 s{sT2}, s{sT2}, s{sWC}
    s_lshl_b32 s{sT2}, s{sT2}, 10
    s_add_u32 s{sT}, s{sT}, s{sT2}""")
    for i in range(8):
        G = [acc[(4 + e, i)][1] + 2*z for e in range(2) for z in range(2)]
        U = [acc[(6 + e, i)][1] + 2*z for e in range(2) for z in range(2)]
        TT = [T + 2*z for z in range(4)]
        for z in range(4): A(f"v_pk_mul_f32 {v(TT[z],2)}, {v(G[z],2)}, {v(G[z],2)}")
        for z in range(4): A(f"v_pk_fma_f32 {v(TT[z],2)}, {v(TT[z],2)}, {v(K2,2)}, {v(K1,2)}")
        for z in range(4): A(f"v_pk_mul_f32 {v(TT[z],2)}, {v(TT[z],2)}, {v(G[z],2)}")
        for z in range(8): A(f"v_exp_f32 v{T+z}, v{T+z}")
        for z in range(4): A(f"v_pk_mul_f32 {v(G[z],2)}, {v(G[z],2)}, {v(U[z],2)}")
        for z in range(4): A(f"v_pk_add_f32 {v(TT[z],2)}, {v(TT[z],2)}, {v(ONE,2)}")
        for z in range(8): A(f"v_rcp_f32 v{T+z}, v{T+z}")
        if i: A(f"s_add_u32 s{sT}, s{sT}, {A3_ROW}")
        for z in range(4): A(f"v_pk_mul_f32 {v(G[z],2)}, {v(G[z],2)}, {v(TT[z],2)}")
        d = acc[(6, i)][1]
        pack(A, d, G[0], G[2])
        A(f"buffer_store_dwordx4 {v(d,4)}, v{vL16}, {s(rX,4)}, s{sT} offen")
    A.label("L_no_ffn")
    A(f"""s_waitcnt vmcnt(0) lgkmcnt(0)
    v_mov_b32 v{vD}, v1
    v_mov_b32 v{vR}, v{vL16}
    v_mov_b32 v{vNeg}, {hex(f2u(-1e30))}
    s_mov_b32 s{sRd}, 0
    s_mov_b32 s{sWs}, {3*32768}
    s_mov_b32 s{sSrc}, {3*32768 + 8192}
    s_cmp_eq_u32 s{sI}, 0
    v_mov_b32 v{vTmp+16}, 0""")
    for rr in range(4):
        A(f"s_cselect_b64 vcc, {s(sMask + 2*rr, 2)}, -1\nv_cndmask_b32 v{vCm+rr}, v{vNeg}, v{vTmp+16}, vcc")
    for k in range(4): A(f"v_mov_b32 v{vOne+k}, 0x3f803f80")
    mf, gaps = [], []
    z = list(range(vO, vO + 128, 2)) + list(range(vLs, vLs + 16, 2)) + [vP, vP + 2]
    for ks in range(4):
        for q in range(4):
            mf.append(mfma(('v', vTmp + 4*q), Kf(0, ks), Qf(q, ks), None if ks else (('v', vCm) if q == 0 else "0")))
            gaps.append([])
    emit_gaps(A, mf, gaps)
    for x in z: A(f"v_mov_b64 {v(x,2)}, 0")
    for k in range(8): A(f"v_mov_b32 v{vS+8+k}, v{vNeg}")
    for q in range(4):
        t = vTmp + 4*q
        A(f"v_max3_f32 v{t}, v{t}, v{t+1}, v{t+2}")
    for q in range(4):
        t = vTmp + 4*q
        A(f"v_max_f32 v{t}, v{t}, v{t+3}")
    for sw in ("v_permlane32_swap_b32", "v_permlane16_swap_b32"):
        for q in range(4): A(f"v_mov_b32 v{vTmp+4*q+1}, v{vTmp+4*q}")
        for q in range(4): A(f"{sw} v{vTmp+4*q}, v{vTmp+4*q+1}")
        for q in range(4): A(f"v_max_f32 v{vTmp+4*q}, v{vTmp+4*q}, v{vTmp+4*q+1}")
    for q in range(4):
        for k in range(4): A(f"v_sub_f32 v{vNM+4*q+k}, 0, v{vTmp+4*q}")
    attention(A)
    A(f"""s_lshl_b32 s{sT2}, s{sH}, 12
    s_add_u32 s{sT2}, s{sT2}, {56*1024}
    s_nop 4""")
    for q in range(4):
        A(f"v_rcp_f32 v{vTmp+2*q}, v{vLs+4*q}")
    for q in range(4):
        A(f"v_mov_b32 v{vTmp+2*q+1}, v{vTmp+2*q}")
    for q in range(4):
        if q < 2: A(f"s_lshl_b32 s{sT}, s{sI}, 3")
        else: A(f"s_sub_u32 s{sT}, 15, s{sI}\ns_lshl_b32 s{sT}, s{sT}, 3")
        A(f"""s_add_u32 s{sT}, s{sT}, s{sW}
        s_add_u32 s{sT}, s{sT}, {4*(q & 1)}
        s_mul_i32 s{sT}, s{sT}, {A3_ROW}
        s_add_u32 s{sT}, s{sT}, s{sT2}""")
        for ks in range(4):
            x0 = Of(q, 2*ks)[1]
            for x in range(x0, x0 + 8, 2): A(f"v_pk_mul_f32 {v(x,2)}, {v(x,2)}, {v(vTmp+2*q,2)}")
            pack(A, x0, x0, x0 + 4)
            A(f"buffer_store_dwordx4 {v(x0,4)}, v{vL16}, {s(rX,4)}, s{sT} offen offset:{ks*1024}")
    A.label("L2_end")
    A("s_endpgm")

def k3(A):
    D = 6
    prologue(A, "L3_end")
    A("s_waitcnt lgkmcnt(0)")
    srd(A, rA, sWS, WS_A3, A3_SIZE)
    srd(A, rW, sWD, 0, 1792*1024)
    srd(A, rO, sWO, 0, 4096*1024)
    srd(A, rX, sX, 0, 0x200000)
    vA, vW, vT = 1, 2, 4
    A(f"""s_mul_i32 s{sT}, s{sH}, {4*A3_ROW}
    v_add_u32 v{vA}, s{sT}, v{vL16}
    v_lshrrev_b32 v8, 3, v{vL}
    v_and_b32 v9, 7, v{vL}
    v_lshrrev_b32 v10, 4, v{vL}
    v_lshlrev_b32 v11, 1, v10
    v_xor_b32 v9, v9, v11
    v_lshlrev_b32 v9, 4, v9
    v_lshl_add_u32 v9, v8, 10, v9
    s_lshl_b32 s{sT}, s{sI}, 7
    v_add_u32 v{vW}, s{sT}, v9
    v_lshrrev_b32 v8, 2, v{vL}
    v_bfe_u32 v9, v8, 1, 2
    v_lshlrev_b32 v9, 5, v9
    v_lshl_add_u32 v9, v8, 7, v9
    v_and_b32 v8, 3, v{vL}
    v_lshl_add_u32 v9, v8, 3, v9
    s_lshl_b32 s{sWm}, s{sW}, 15
    v_add_u32 v{vT}, s{sWm}, v9
    v_xor_b32 v{vT+1}, 32, v{vT}
    v_xor_b32 v{vT+2}, 64, v{vT}
    v_xor_b32 v{vT+3}, 96, v{vT}
    s_mul_i32 s64, s{sW}, {14*1024}
    s_mul_i32 s65, s{sW}, {14*32768}
    s_lshl_b32 s66, s{sW}, 15
    s_add_u32 s66, s66, {56*1024}
    s_lshl_b32 s67, s{sW}, 20""")
    A(f"""v_and_b32 v8, 15, v{vL}
    s_lshl_b32 s{sT}, s{sH}, 2
    s_add_u32 s{sT}, s{sT}, s{sW}
    s_lshl_b32 s{sT}, s{sT}, 14
    s_lshl_b32 s{sT2}, s{sI}, 7
    s_add_u32 s{sT}, s{sT}, s{sT2}
    v_lshlrev_b32 v9, 4, v10
    v_lshl_add_u32 v9, v8, 10, v9
    v_add_u32 v12, s{sT}, v9""")
    A(f"buffer_load_dwordx4 v[96:99], v12, {s(rX,4)}, 0 offen", vm='x')
    A(f"buffer_load_dwordx4 v[100:103], v12, {s(rX,4)}, 0 offen offset:64", vm='x')
    NS = 46
    def Af(k, i): return ('a', 16*(k % (D + 2)) + 4*i)
    def Wf(k, j): return ('a', 128 + 16*(k & 1) + 4*j)
    def loads(k):
        out = []
        hpart = k < 14; kk = k if hpart else k - 14
        for j in range(4):
            pre = []
            if j == 0: pre.append(S(f"s_add_u32 m0, s{sWm}, {(k % 8) * 4096}"))
            so = 68 + j
            pre.append(S(f"s_add_u32 s{so}, s{65 if hpart else 67}, {kk*32768 + j*7168}"))
            out.append((pre, VM(f"buffer_load_dwordx4 v{vW}, {s(rW if hpart else rO,4)}, s{so} offen offset:{1024*j} lds", ('W', k))))
        for i in range(4):
            so = 72 + i
            pre = [S(f"s_add_u32 s{so}, s{64 if hpart else 66}, {kk*1024 + i*A3_ROW}")]
            out.append((pre, VM(f"buffer_load_dwordx4 {r(Af(k, i))}, v{vA}, {s(rA,4)}, s{so} offen", ('A', k))))
        return out
    def rds(k):
        return [DS(f"ds_read_b64_tr_b16 {a(Wf(k, j)[1] + 2*t, 2)}, v{vT+j} offset:{(k % 8)*4096 + t*2048}", ('F', k)) for j in range(4) for t in range(2)]
    for k in range(D + 1): emit_plain(A, loads(k))
    emit_gaps(A, [None, None, None], [[wait(vm=lambda t: t == ('W', 0))], rds(0), [wait(vm=lambda t: t in (('A', 0), ('W', 1)), lg=0)]])
    for k in range(NS):
        mf = [mfma(('v', 16 + 4*(4*j + i)), Wf(k, j), Af(k, i), "0" if k == 0 else None) for j in range(4) for i in range(4)]
        gaps = [[] for _ in range(16)]
        if k + 1 < NS:
            rr = rds(k + 1)
            for z in range(4): gaps[2*z] += rr[2*z:2*z+2]
        if k + D + 1 < NS:
            for z, (pre, d) in enumerate(loads(k + D + 1)):
                gaps[2*z] += pre; gaps[2*z+1].append(d)
        emit_gaps(A, mf, gaps)
        if k + 1 < NS:
            emit_gaps(A, [None], [[wait(vm=lambda t: t in (('A', k + 1), ('W', k + 2)), lg=0)]])
    A(f"""s_nop 4
    s_lshl_b32 s{sT}, s{sW}, 15
    v_add_u32 v1, s{sT}, v{vL16}
    s_nop 2""")
    for n in range(16): A(f"ds_write_b128 v1, {v(16+4*n,4)} offset:{n*1024}")
    A(f"""v_lshrrev_b32 v8, 5, v{vL}
    v_lshlrev_b32 v8, 12, v8
    v_bfe_u32 v9, v{vL}, 4, 1
    v_lshl_add_u32 v8, v9, 9, v8
    v_and_b32 v9, 15, v{vL}
    v_lshl_add_u32 v8, v9, 4, v8
    s_lshl_b32 s{sT}, s{sW}, 10
    v_add_u32 v8, s{sT}, v8
    v_add_u32 v9, 0x10000, v8
    s_waitcnt lgkmcnt(0)
    s_barrier""")
    for ww in range(4):
        for p in range(2):
            for hf in range(2):
                A(f"ds_read_b128 {v(128 + 16*ww + 8*p + 4*hf, 4)}, v{8 + (ww >> 1)} offset:{(ww & 1)*32768 + p*8192 + hf*256}")
    srd(A, rX, sOUT, 0, 0x200000)
    for k in range(8):
        A(f"v_lshlrev_b32 v{104+2*k}, 16, v{96+k}\nv_and_b32 v{105+2*k}, 0xffff0000, v{96+k}")
    for ww in range(4):
        A(f"s_waitcnt lgkmcnt({12 - 4*ww})")
        for k in range(0, 16, 2): A(f"v_pk_add_f32 {v(104+k,2)}, {v(104+k,2)}, {v(128+16*ww+k,2)}")
    for p in range(2):
        pack(A, 96 + 4*p, 104 + 8*p, 108 + 8*p)
        A(f"buffer_store_dwordx4 {v(96+4*p,4)}, v12, {s(rX,4)}, 0 offen offset:{64*p}")
    A.label("L3_end")
    A("s_endpgm")

def build():
    hdr = open("cdna_kernels/" + NAME + ".s.ref").read().split("\n")
    top = [l for l in hdr if l.startswith(";") and "@launch" not in l and "Override" not in l and "grid=ceil" not in l]
    ks = [("kv_kernel", k1, 163840), ("attn_kernel", k2, 163840), (NAME + "_kernel", k3, 131072)]
    out = "\n".join(top) + "\n"
    for n, f, lds in ks: out += f"; @launch kernel={n} grid=(256,1,1) block=(256,1,1) lds={lds}\n"
    out += '.amdgcn_target "amdgcn-amd-amdhsa--gfx950"\n.text\n'
    for n, f, lds in ks:
        A = Asm(); f(A)
        out += f".globl {n}\n.p2align 8\n.type {n},@function\n{n}:\n" + A.text()
    out += '.section .rodata,"a"\n'
    for n, f, lds in ks:
        out += f""".p2align 6
.amdhsa_kernel {n}
  .amdhsa_next_free_vgpr 512
  .amdhsa_next_free_sgpr 102
  .amdhsa_accum_offset 256
  .amdhsa_group_segment_fixed_size 0
  .amdhsa_kernarg_size 104
  .amdhsa_user_sgpr_count 2
  .amdhsa_user_sgpr_kernarg_segment_ptr 1
  .amdhsa_system_sgpr_workgroup_id_x 1
.end_amdhsa_kernel
"""
    return out

if __name__ == "__main__":
    dst = sys.argv[1] if len(sys.argv) > 1 else "cdna_kernels/" + NAME + ".s"
    open(dst, "w").write(build())
```

```python
import sys
N="parallel_sum__compressed_kv_cla__glu_gated_geglu__prompt_kernel"
src, out, A, B, off = sys.argv[1], sys.argv[2], int(sys.argv[3]), int(sys.argv[4]), int(sys.argv[5])
s = open(src).read()
l = "; @launch grid=(256,1,1) block=(256,1,1) lds=163840\n"
red = "\n".join(f"v_xor_b32 v10, {m*4}, v9\nds_bpermute_b32 v11, v10, v3\ns_waitcnt lgkmcnt(0)\nv_add_u32 v3, v3, v11" for m in (1, 2, 4, 8, 16, 32))
body = f""".globl diag_kernel
.p2align 8
.type diag_kernel,@function
diag_kernel:
s_cmp_ge_u32 s2, 1
s_cbranch_scc1 Ld_end
s_load_dwordx2 s[4:5], s[0:1], 96
v_lshlrev_b32 v9, 2, v0
v_mul_u32_u24 v1, 3072, v0
s_waitcnt lgkmcnt(0)
s_add_u32 s8, s4, 0x4000000
s_addc_u32 s9, s5, 0
s_mov_b32 s10, 0x100000
s_mov_b32 s11, 0x20000
buffer_load_dword v2, v1, s[8:11], 0 offen offset:{8*A+4}
buffer_load_dword v3, v1, s[8:11], 0 offen offset:{8*B+4}
s_waitcnt vmcnt(0)
v_sub_u32 v3, v3, v2
{red}
s_nop 1
v_readfirstlane_b32 s14, v3
s_memrealtime s[12:13]
s_mul_i32 s14, s14, 10
s_lshr_b32 s14, s14, 6
s_max_u32 s14, s14, {10*off}
s_sub_u32 s14, s14, {10*off}
s_min_u32 s14, s14, 20000
s_mov_b32 s15, 200000
s_waitcnt lgkmcnt(0)
Ld_spin:
s_memrealtime s[16:17]
s_waitcnt lgkmcnt(0)
s_sub_u32 s16, s16, s12
s_sub_u32 s15, s15, 1
s_cbranch_scc1 Ld_end
s_cmp_lt_u32 s16, s14
s_cbranch_scc1 Ld_spin
Ld_end:
s_endpgm
.section .rodata"""
kd = """.p2align 6
.amdhsa_kernel diag_kernel
  .amdhsa_next_free_vgpr 16
  .amdhsa_next_free_sgpr 32
  .amdhsa_accum_offset 16
  .amdhsa_group_segment_fixed_size 0
  .amdhsa_kernarg_size 104
  .amdhsa_user_sgpr_count 2
  .amdhsa_user_sgpr_kernarg_segment_ptr 1
  .amdhsa_system_sgpr_workgroup_id_x 1
.end_amdhsa_kernel
"""
o = s.replace(".section .rodata", body) + kd
o = o.replace(l, f"; @launch kernel={N} grid=(256,1,1) block=(256,1,1) lds=163840\n; @launch kernel=diag_kernel grid=(1,1,1) block=(64,1,1) lds=0\n")
open(out, "w").write(o)
```
